```python
import torch

def _softmax(x, axis=-1):
    return torch.softmax(x, dim=axis)

def _gelu(x):
    return torch.nn.functional.gelu(x, approximate='tanh')

def _silu(x):
    return torch.nn.functional.silu(x)

def _sigmoid(x):
    return torch.sigmoid(x)

def _layernorm(x, axis=-1, eps=1e-05):
    m = x.mean(dim=axis, keepdim=True)
    v = x.var(dim=axis, keepdim=True, unbiased=False)
    return (x - m) / torch.sqrt(v + eps)

def _scatter_add(tgt, idx, src, axis=0):
    return tgt.clone().index_add_(axis, idx, src)

def _segment_sum(src, seg, n):
    out = torch.zeros((n,) + src.shape[1:], dtype=src.dtype)
    return out.index_add_(0, seg, src)

def _pad(x, pw):
    flat = tuple((v for pair in reversed(pw) for v in pair))
    return torch.nn.functional.pad(x, flat)
kernel_name = 'adaLN_cond__memory_aug_recurrent_mem_tr__glu_gated_reglu__prompt'

def setup_inputs():

    _w = lambda a: (lambda t: t.to(torch.bfloat16) if t.is_floating_point() else t)(torch.as_tensor(a))

    def _A_setup():
        B, S, Dm = (1, 2048, 576)
        H, Dh = (32, 128)
        M, seg = (8, 32)
        seg = min(seg, S)
        S = S // seg * seg
        return {'x': _w((lambda *s: torch.randn(*s, dtype=torch.bfloat16) * 0.05)(B, S, Dm)), 'mem0': _w((lambda *s: torch.randn(*s, dtype=torch.bfloat16) * 0.8)(B, M, Dm)), 'Wq': _w((lambda *s: torch.randn(*s, dtype=torch.bfloat16) * 0.8)(Dm, H, Dh) * Dm ** (-0.5)), 'Wk': _w((lambda *s: torch.randn(*s, dtype=torch.bfloat16) * 0.8)(Dm, H, Dh) * Dm ** (-0.5)), 'Wv': _w((lambda *s: torch.randn(*s, dtype=torch.bfloat16) * 0.8)(Dm, H, Dh) * Dm ** (-0.5)), 'Wo': _w((lambda *s: torch.randn(*s, dtype=torch.bfloat16) * 0.8)(H, Dh, Dm) * (H * Dh) ** (-0.5)), 'seg_len': seg}
    _A_in = _A_setup()

    def _B_setup():
        B, S, D, F = (1, 2048, 576, 4608)
        return {'x': _w((lambda *s: torch.randn(*s, dtype=torch.bfloat16) * 0.05)(B, S, D)), 'W_gate': _w((lambda *s: torch.randn(*s, dtype=torch.bfloat16) * 0.4)(D, F) * (2.0 / D) ** 0.5), 'W_up': _w((lambda *s: torch.randn(*s, dtype=torch.bfloat16) * 0.4)(D, F) * (2.0 / D) ** 0.5), 'W_down': _w((lambda *s: torch.randn(*s, dtype=torch.bfloat16) * 0.4)(F, D) * (1.0 / F) ** 0.5)}
    _B_in = _B_setup()
    return {'A_x': _A_in['x'], 'A_mem0': _A_in['mem0'], 'A_Wq': _A_in['Wq'], 'A_Wk': _A_in['Wk'], 'A_Wv': _A_in['Wv'], 'A_Wo': _A_in['Wo'], 'A_seg_len': _A_in['seg_len'], 'B_x': _B_in['x'], 'B_W_gate': _B_in['W_gate'], 'B_W_up': _B_in['W_up'], 'B_W_down': _B_in['W_down'], 'c': _w((lambda *s: torch.randn(*s, dtype=torch.bfloat16) * 0.1)(1, 576) * 8.0), 'w_mod': _w((lambda *s: torch.randn(*s, dtype=torch.bfloat16) * 0.1)(576, 6 * 576) * 576 ** (-0.5) * 8.0)}

def reference(A_x, A_mem0, A_Wq, A_Wk, A_Wv, A_Wo, A_seg_len, B_x, B_W_gate, B_W_up, B_W_down, c, w_mod):

    def _A_ref(x, mem0, Wq, Wk, Wv, Wo, seg_len):
        B, S, Dm = x.shape
        H, Dh = (Wq.shape[1], Wq.shape[2])
        M = mem0.shape[1]
        scale = Dh ** (-0.5)
        n_seg = S // seg_len
        L = M + seg_len
        idx = torch.arange(L)
        mask = (idx[:, None] < M) | (idx[:, None] >= idx[None, :])
        mem = mem0
        outs = []
        for s in range(n_seg):
            xs = x[:, s * seg_len:(s + 1) * seg_len, :].clone()
            h = torch.concatenate([mem, xs], axis=1)
            q = torch.einsum('btd,dhe->bhte', h, Wq)
            k = torch.einsum('btd,dhe->bhte', h, Wk)
            v = torch.einsum('btd,dhe->bhte', h, Wv)
            scores = torch.einsum('bhqe,bhke->bhqk', q, k) * scale
            scores = torch.where(mask[None, None], scores, -1000000000.0)
            p = _softmax(scores, axis=-1)
            o = torch.einsum('bhqk,bhke->bhqe', p, v)
            o = torch.einsum('bhte,hed->btd', o, Wo)
            mem = o[:, :M, :].clone()
            outs.append(o[:, M:, :])
        return torch.concatenate(outs, axis=1)

    def _B_ref(x, W_gate, W_up, W_down):
        gate = torch.einsum('bsd,df->bsf', x, W_gate)
        up = torch.einsum('bsd,df->bsf', x, W_up)
        gate = gate * (lambda x, dt: x.to(dt))(gate > 0, gate.dtype)
        h = gate * up
        return torch.einsum('bsf,fd->bsd', h, W_down)
    x = A_x
    mod = (_silu(c) @ w_mod).reshape(c.shape[0], 6, 1, -1)
    sa, ca, ga, sb, cb, gb = (mod[:, 0].clone(), mod[:, 1].clone(), mod[:, 2].clone(), mod[:, 3].clone(), mod[:, 4].clone(), mod[:, 5].clone())
    h = _layernorm(x, axis=-1) * (1 + ca) + sa
    x = x + ga * _A_ref(h, A_mem0, A_Wq, A_Wk, A_Wv, A_Wo, A_seg_len)
    h = _layernorm(x, axis=-1) * (1 + cb) + sb
    x = x + gb * _B_ref(h, B_W_gate, B_W_up, B_W_down)
    return x
```

```python
class K:
    def __init__(self, name):
        self.name = name
        self.lines = []
        self.nlabel = 0
    def __call__(self, s):
        for ln in s.strip("\n").split("\n"):
            self.lines.append("    " + ln.strip())
    def label(self, l):
        self.lines.append(l + ":")
    def newlabel(self, base="L"):
        self.nlabel += 1
        return f"{self.name}_{base}{self.nlabel}"
    def text(self, vgpr, sgpr, accum, extra_dir=""):
        out = [".p2align 8", f".globl {self.name}", f".type {self.name},@function", f"{self.name}:"]
        out += self.lines
        out.append("    s_endpgm")
        desc = f""".section .rodata,"a"
.p2align 6
.amdhsa_kernel {self.name}
  .amdhsa_next_free_vgpr {vgpr}
  .amdhsa_next_free_sgpr {sgpr}
  .amdhsa_accum_offset {accum}
  .amdhsa_group_segment_fixed_size 0
  .amdhsa_kernarg_size 128
  .amdhsa_user_sgpr_count 2
  .amdhsa_user_sgpr_kernarg_segment_ptr 1
  .amdhsa_system_sgpr_workgroup_id_x 1
{extra_dir}.end_amdhsa_kernel
.text"""
        return "\n".join(out) + "\n" + desc + "\n"

KA = dict(x=0, mem0=8, Wq=16, Wk=24, Wv=32, Wo=40, seg=48, Bx=56, Wg=64, Wu=72, Wd=80, c=88, wmod=96,
          out=104, dbg=112, ws=120)

WS = {}
_off = 0
def _alloc(name, nbytes, align=4096):
    global _off
    _off = (_off + align - 1) // align * align
    WS[name] = _off
    _off += nbytes
_alloc("mod", 3456 * 4)
_alloc("cnt", 64 * 256)
NREP = 2
_alloc("acc", 64 * NREP * 8 * 576 * 4)
_alloc("h", 2048 * 576 * 2)
_alloc("q", 2048 * 4096 * 2)
_alloc("k", 2048 * 4096 * 2)
_alloc("vt", 2048 * 4096 * 2)
_alloc("km", 64 * 32 * 8 * 128 * 2)
_alloc("vmt", 64 * 32 * 128 * 8 * 2)
_alloc("o", 2048 * 4096 * 2)
_alloc("x1", 2048 * 576 * 2)
_alloc("h2", 2048 * 576 * 2)
_alloc("hid", 2048 * 4608 * 2)
WS_END = _off

def srd(k, d, base_lo, base_hi, nbytes, off=0):
    if off:
        k(f"s_add_u32 s{d}, s{base_lo}, {off}")
        k(f"s_addc_u32 s{d+1}, s{base_hi}, 0")
    else:
        k(f"s_mov_b32 s{d}, s{base_lo}")
        k(f"s_mov_b32 s{d+1}, s{base_hi}")
    k(f"s_mov_b32 s{d+2}, {nbytes}")
    k(f"s_mov_b32 s{d+3}, 0x00020000")
```

```python
from asmlib import *
import asmlib
def gen_attn():
    k = asmlib.K("attn_kernel")
    end = "attn_kernel_end"
    k(f"""
    s_cmp_ge_u32 s2, 512
    s_cbranch_scc1 {end}
    s_load_dwordx2 s[4:5], s[0:1], 120
    v_and_b32 v1, 15, v0
    v_bfe_u32 v2, v0, 4, 2
    v_lshrrev_b32 v3, 6, v0
    s_nop 0
    v_readfirstlane_b32 s21, v3
    s_lshr_b32 s22, s2, 3
    s_and_b32 s23, s2, 7
    s_lshl_b32 s23, s23, 2
    s_waitcnt lgkmcnt(0)
    s_add_u32 s23, s23, s21
    """)
    srd(k, 8, 4, 5, WS_END)
    k(f"""
    s_lshl_b32 s24, s22, 18
    s_lshl_b32 s25, s23, 8
    s_add_u32 s24, s24, s25
    s_add_u32 s26, s24, {WS['k']}
    s_add_u32 s24, s24, {WS['q']}
    s_lshl_b32 s25, s22, 5
    s_add_u32 s25, s25, s23
    s_lshl_b32 s27, s25, 11
    s_add_u32 s28, s27, {WS['vmt']}
    s_add_u32 s27, s27, {WS['km']}
    s_lshl_b32 s29, s25, 13
    s_add_u32 s29, s29, {WS['vt']}
    v_lshlrev_b32 v4, 13, v1
    v_lshl_add_u32 v4, v2, 4, v4
    v_and_b32 v5, 7, v0
    v_lshlrev_b32 v5, 8, v5
    v_lshl_add_u32 v5, v2, 4, v5
    v_lshlrev_b32 v6, 6, v1
    v_lshl_add_u32 v6, v2, 3, v6
    v_and_b32 v7, 1, v2
    v_lshlrev_b32 v7, 3, v7
    v_lshl_add_u32 v7, v1, 4, v7
    s_add_u32 s30, s24, 131072
    s_add_u32 s31, s26, 131072
    """)
    QF = 16; KF = 48; VF = 96
    for qt in range(2):
        for ks in range(4):
            k(f"buffer_load_dwordx4 v[{QF+16*qt+4*ks}:{QF+16*qt+4*ks+3}], v4, s[8:11], {'s24' if qt==0 else 's30'} offen offset:{ks*64}")
    for ks in range(4):
        k(f"buffer_load_dwordx4 v[{KF+4*ks}:{KF+4*ks+3}], v5, s[8:11], s27 offen offset:{ks*64}")
    for xt in range(2):
        for ks in range(4):
            b = KF + 16 * (xt + 1) + 4 * ks
            k(f"buffer_load_dwordx4 v[{b}:{b+3}], v4, s[8:11], {'s26' if xt==0 else 's31'} offen offset:{ks*64}")
    for et in range(8):
        b = VF + 8 * et
        k(f"buffer_load_dwordx2 v[{b}:{b+1}], v7, s[8:11], s28 offen offset:{et*256}")
        if et == 4:
            k("v_add_u32 v6, 4096, v6")
        k(f"buffer_load_dwordx2 v[{b+2}:{b+3}], v6, s[8:11], s29 offen offset:{(et%4)*1024}")
        k(f"buffer_load_dwordx2 v[{b+4}:{b+5}], v6, s[8:11], s29 offen offset:{(et%4)*1024+32}")
        k(f"v_mov_b32 v{b+6}, 0\nv_mov_b32 v{b+7}, 0")
    SC = 160
    k("s_waitcnt vmcnt(24)")
    for qt in range(2):
        for kt in range(3):
            c = SC + 12 * qt + 4 * kt
            for ks in range(4):
                a = KF + 16 * kt + 4 * ks; b = QF + 16 * qt + 4 * ks
                cin = "0" if ks == 0 else f"v[{c}:{c+3}]"
                k(f"v_mfma_f32_16x16x32_bf16 v[{c}:{c+3}], v[{a}:{a+3}], v[{b}:{b+3}], {cin}")
    k(f"""
    s_nop 7
    s_nop 1
    s_mov_b32 s44, 0x3fb8aa3b
    s_mov_b32 s45, 0x3db504f3
    v_mov_b32 v8, 0xce6e6b28
    v_lshlrev_b32 v9, 2, v2
    """)
    T = 200
    for qt in range(2):
        S = SC + 12 * qt
        for i in range(0, 12, 2):
            k(f"""
            v_cvt_pk_bf16_f32 v{T}, v{S+i}, v{S+i+1}
            v_lshlrev_b32 v{S+i}, 16, v{T}
            v_and_b32 v{S+i+1}, 0xffff0000, v{T}
            v_mul_f32 v{S+i}, s45, v{S+i}
            v_mul_f32 v{S+i+1}, s45, v{S+i+1}
            v_cvt_pk_bf16_f32 v{T}, v{S+i}, v{S+i+1}
            v_lshlrev_b32 v{S+i}, 16, v{T}
            v_and_b32 v{S+i+1}, 0xffff0000, v{T}
            """)
        k("v_cmp_gt_u32 vcc, 2, v2")
        k("v_mov_b32 v10, 0xff800000\ns_nop 1")
        for r in range(4):
            k(f"v_cndmask_b32 v{S+r}, v10, v{S+r}, vcc")
        for xt in range(2):
            for r in range(4):
                d = 16 * xt + r - 16 * qt
                k(f"v_add_u32 v10, {d}, v9")
                k(f"v_cmp_le_i32 vcc, v10, v1\ns_nop 1")
                k(f"v_cndmask_b32 v{S+4+4*xt+r}, v8, v{S+4+4*xt+r}, vcc")
        k(f"""
        v_max3_f32 v{T}, v{S}, v{S+1}, v{S+2}
        v_max3_f32 v{T}, v{T}, v{S+3}, v{S+4}
        v_max3_f32 v{T}, v{T}, v{S+5}, v{S+6}
        v_max3_f32 v{T}, v{T}, v{S+7}, v{S+8}
        v_max3_f32 v{T}, v{T}, v{S+9}, v{S+10}
        v_max_f32 v{T}, v{T}, v{S+11}
        v_mov_b32 v{T+1}, v{T}
        s_nop 1
        v_permlane32_swap_b32 v{T}, v{T+1}
        s_nop 1
        v_max_f32 v{T}, v{T}, v{T+1}
        v_mov_b32 v{T+1}, v{T}
        s_nop 1
        v_permlane16_swap_b32 v{T}, v{T+1}
        s_nop 1
        v_max_f32 v{T}, v{T}, v{T+1}
        """)
        for i in range(12):
            k(f"""
            v_sub_f32 v{S+i}, v{S+i}, v{T}
            v_mul_f32 v{S+i}, s44, v{S+i}
            v_exp_f32 v{S+i}, v{S+i}
            """)
        k(f"s_nop 0\nv_add_f32 v{T}, v{S}, v{S+1}")
        for i in range(2, 12):
            k(f"v_add_f32 v{T}, v{T}, v{S+i}")
        k(f"""
        v_mov_b32 v{T+1}, v{T}
        s_nop 1
        v_permlane32_swap_b32 v{T}, v{T+1}
        s_nop 1
        v_add_f32 v{T}, v{T}, v{T+1}
        v_mov_b32 v{T+1}, v{T}
        s_nop 1
        v_permlane16_swap_b32 v{T}, v{T+1}
        s_nop 1
        v_add_f32 v{T}, v{T}, v{T+1}
        v_rcp_f32 v{T}, v{T}
        s_nop 0
        """)
        for i in range(12):
            k(f"v_mul_f32 v{S+i}, v{S+i}, v{T}")
        P = 208 + 8 * qt
        for i in range(6):
            k(f"v_cvt_pk_bf16_f32 v{P+i}, v{S+2*i}, v{S+2*i+1}")
        k(f"v_mov_b32 v{P+6}, 0\nv_mov_b32 v{P+7}, 0")
    k("s_waitcnt vmcnt(0)\ns_nop 1")
    k(f"""
    s_lshl_b32 s24, s22, 18
    s_lshl_b32 s25, s23, 8
    s_add_u32 s24, s24, s25
    s_add_u32 s24, s24, {WS['o']}
    s_add_u32 s30, s24, 131072
    v_lshlrev_b32 v4, 13, v1
    v_lshl_add_u32 v4, v2, 3, v4
    """)
    O = 16
    for qt in range(2):
        P = 208 + 8 * qt
        for et in range(8):
            c = O + 4 * (qt * 8 + et); b = VF + 8 * et
            k(f"v_mfma_f32_16x16x32_bf16 v[{c}:{c+3}], v[{b}:{b+3}], v[{P}:{P+3}], 0")
            k(f"v_mfma_f32_16x16x32_bf16 v[{c}:{c+3}], v[{b+4}:{b+7}], v[{P+4}:{P+7}], v[{c}:{c+3}]")
    k("s_nop 7\ns_nop 1")
    for qt in range(2):
        for et in range(8):
            c = O + 4 * (qt * 8 + et)
            k(f"v_cvt_pk_bf16_f32 v{c}, v{c}, v{c+1}\nv_cvt_pk_bf16_f32 v{c+1}, v{c+2}, v{c+3}")
        for et in range(8):
            c = O + 4 * (qt * 8 + et)
            k(f"buffer_store_dwordx2 v[{c}:{c+1}], v4, s[8:11], {'s24' if qt==0 else 's30'} offen offset:{et*32}")
    k.label(end)
    return k.text(232, 48, 232)
```

```python
from asmlib import *
import asmlib

def wreg(f):
    if f < 64:
        return f"a[{4*f}:{4*f+3}]"
    b = 80 + 4 * (f - 64)
    return f"v[{b}:{b+3}]"
def wreg2(f, half):
    if f < 64:
        return f"a[{4*f+2*half}:{4*f+2*half+1}]"
    b = 80 + 4 * (f - 64) + 2 * half
    return f"v[{b}:{b+1}]"

LDS_WO = 0
LDS_MEM = 147456
LDS_SC = 147456 + 9216
LDS_O = 147456
LDS_STG = 147456

def gen_chain(nsteps=64, spin_limit=2000000):
    k = asmlib.K("chain_kernel")
    end = "chain_kernel_end"
    k(f"""
    s_cmp_ge_u32 s2, 32
    s_cbranch_scc1 {end}
    s_load_dwordx2 s[4:5], s[0:1], 120
    s_load_dwordx2 s[6:7], s[0:1], 8
    s_load_dwordx4 s[36:39], s[0:1], 16
    s_load_dwordx4 s[40:43], s[0:1], 32
    v_and_b32 v1, 15, v0
    v_bfe_u32 v2, v0, 4, 2
    v_lshrrev_b32 v3, 6, v0
    v_and_b32 v4, 63, v0
    s_nop 0
    v_readfirstlane_b32 s21, v3
    s_waitcnt lgkmcnt(0)
    """)
    srd(k, 8, 4, 5, WS_END)
    srd(k, 12, 6, 7, 9216)
    k(f"""
    v_lshrrev_b32 v5, 4, v0
    s_lshl_b32 s22, s2, 8
    v_mul_u32_u24 v6, 8192, v5
    v_lshl_add_u32 v6, v1, 4, v6
    v_add_u32 v6, s22, v6
    """)
    k(f"""
    v_bfe_u32 v7, v0, 2, 2
    v_lshl_add_u32 v7, v2, 2, v7
    v_mul_u32_u24 v7, 288, v7
    v_and_b32 v8, 3, v0
    v_lshlrev_b32 v8, 3, v8
    v_lshl_add_u32 v8, v3, 6, v8
    v_add_u32 v7, v7, v8
    """)
    wptr = {0: (36, 37), 1: (38, 39), 2: (40, 41)}
    for m in range(3):
        srd(k, 16, wptr[m][0], wptr[m][1], 576 * 8192)
        for half in range(2):
            for b in range(3):
                for i in range(6):
                    ii = b * 6 + i
                    k(f"s_mov_b32 s23, {(288*half + 16*ii)*8192}")
                    k(f"buffer_load_dwordx4 v[{16+4*i}:{19+4*i}], v6, s[16:19], s23 offen")
                k("s_waitcnt vmcnt(0)")
                for i in range(6):
                    ii = b * 6 + i
                    k(f"""
                    v_add_u32 v9, {16*ii}, v5
                    v_and_b32 v10, 0xffffffe0, v9
                    v_bfe_u32 v11, v9, 2, 1
                    v_lshl_add_u32 v10, v11, 4, v10
                    v_bfe_u32 v11, v9, 3, 2
                    v_lshl_add_u32 v10, v11, 2, v10
                    v_and_b32 v11, 3, v9
                    v_add_u32 v10, v10, v11
                    v_mul_u32_u24 v10, 288, v10
                    v_lshl_add_u32 v10, v1, 4, v10
                    ds_write_b128 v10, v[{16+4*i}:{19+4*i}]
                    """)
            k("s_waitcnt lgkmcnt(0)\ns_barrier")
            k("v_add_u32 v8, 46080, v7")
            for ks in range(9):
                for t in range(2):
                    f = (m * 18 + half * 9 + ks) * 2 + t
                    br = "v7" if ks < 5 else "v8"
                    ko = ks if ks < 5 else ks - 5
                    k(f"ds_read_b64_tr_b16 {wreg2(f,0)}, {br} offset:{ko*32*288 + t*32}")
                    k(f"ds_read_b64_tr_b16 {wreg2(f,1)}, {br} offset:{ko*32*288 + 16*288 + t*32}")
            k("s_waitcnt lgkmcnt(0)\ns_barrier")
    srd(k, 16, 42, 43, 4096 * 1152)
    k(f"""
    v_lshrrev_b32 v5, 3, v0
    v_and_b32 v6, 7, v0
    s_mul_i32 s22, s2, {128*1152}
    v_mul_u32_u24 v8, 1152, v5
    v_lshl_add_u32 v8, v6, 4, v8
    v_add_u32 v8, s22, v8
    v_mul_u32_u24 v9, 416, v5
    v_lshl_add_u32 v9, v6, 4, v9
    v_add_u32 v9, {LDS_STG}, v9
    v_bfe_u32 v7, v0, 2, 2
    v_lshl_add_u32 v7, v2, 2, v7
    v_mul_u32_u24 v7, 416, v7
    v_and_b32 v10, 3, v0
    v_lshlrev_b32 v10, 3, v10
    v_add_u32 v7, v7, v10
    v_mul_u32_u24 v10, 96, v3
    v_add_u32 v7, v7, v10
    v_add_u32 v7, {LDS_STG}, v7
    v_lshlrev_b32 v10, 4, v4
    v_mul_u32_u24 v11, {3*4096}, v3
    v_add_u32 v10, v10, v11
    """)
    for ksp in range(4):
        for nc in range(3):
            k(f"s_mov_b32 s23, {ksp*32*1152 + nc*384}")
            for i in range(3):
                k(f"buffer_load_dwordx4 v[{16+4*i}:{19+4*i}], v8, s[16:19], s23 offen offset:{i*128}")
            k("s_waitcnt vmcnt(0)")
            for i in range(3):
                k(f"ds_write_b128 v9, v[{16+4*i}:{19+4*i}] offset:{i*128}")
            k("s_waitcnt lgkmcnt(0)\ns_barrier")
            for j in range(3):
                k(f"ds_read_b64_tr_b16 v[{16+4*j}:{17+4*j}], v7 offset:{j*32}")
                k(f"ds_read_b64_tr_b16 v[{18+4*j}:{19+4*j}], v7 offset:{16*416 + j*32}")
            k("s_waitcnt lgkmcnt(0)")
            for j in range(3):
                k(f"v_add_u32 v11, {12*nc*4096}, v10")
                k(f"ds_write_b128 v11, v[{16+4*j}:{19+4*j}] offset:{j*4096 + ksp*1024}")
            k("s_waitcnt lgkmcnt(0)\ns_barrier")
    k(f"""
    v_and_b32 v15, 7, v0
    v_mul_u32_u24 v5, 1152, v15
    v_lshl_add_u32 v5, v2, 4, v5
    v_add_u32 v5, {LDS_MEM}, v5
    v_mul_u32_u24 v6, 576, v3
    v_add_u32 v6, v6, v4
    v_lshlrev_b32 v7, 3, v6
    v_lshlrev_b32 v6, 2, v6
    v_add_u32 v6, {LDS_MEM}, v6
    v_lshlrev_b32 v8, 13, v1
    v_lshl_add_u32 v8, v3, 6, v8
    v_lshl_add_u32 v8, v2, 3, v8
    v_lshl_add_u32 v9, v3, 5, v1
    v_lshlrev_b32 v9, 6, v9
    v_lshl_add_u32 v9, v2, 3, v9
    v_lshl_add_u32 v10, v15, 2, v2
    v_mul_u32_u24 v10, 48, v10
    v_add_u32 v10, {LDS_SC}, v10
    v_lshlrev_b32 v11, 4, v4
    v_lshlrev_b32 v12, 2, v2
    v_mul_u32_u24 v12, 2304, v12
    v_lshl_add_u32 v12, v1, 2, v12
    v_mul_u32_u24 v13, {9*64}, v3
    v_add_u32 v12, v12, v13
    v_lshlrev_b32 v13, 8, v1
    v_lshl_add_u32 v13, v3, 6, v13
    v_lshl_add_u32 v13, v2, 3, v13
    v_lshl_add_u32 v14, v3, 5, v1
    v_lshlrev_b32 v14, 4, v14
    v_lshl_add_u32 v14, v2, 3, v14
    s_mov_b32 s20, 0
    s_mov_b32 s44, 0x3fb8aa3b
    s_mov_b32 s45, 0x3db504f3
    v_cmp_gt_u32 s[46:47], 2, v2
    v_cmp_gt_u32 s[48:49], 8, v1
    """)
    KX = 16
    VX = 24
    AQ = 40
    MF = 64
    T = 72
    def kv_prefetch():
        k(f"""
        s_lshl_b32 s24, s20, 18
        s_lshl_b32 s25, s2, 8
        s_add_u32 s24, s24, s25
        s_add_u32 s24, s24, {WS['k']}
        s_add_u32 s26, s24, 131072
        s_lshl_b32 s25, s20, 5
        s_add_u32 s25, s25, s2
        s_lshl_b32 s25, s25, 13
        s_add_u32 s25, s25, {WS['vt']}
        buffer_load_dwordx2 v[{KX}:{KX+1}], v8, s[8:11], s24 offen
        buffer_load_dwordx2 v[{KX+2}:{KX+3}], v8, s[8:11], s24 offen offset:32
        buffer_load_dwordx2 v[{KX+4}:{KX+5}], v8, s[8:11], s26 offen
        buffer_load_dwordx2 v[{KX+6}:{KX+7}], v8, s[8:11], s26 offen offset:32
        """)
        for t in range(2):
            k(f"buffer_load_dwordx2 v[{VX+8*t+2}:{VX+8*t+3}], v9, s[8:11], s25 offen offset:{t*1024}")
            k(f"buffer_load_dwordx2 v[{VX+8*t+4}:{VX+8*t+5}], v9, s[8:11], s25 offen offset:{t*1024+32}")
            k(f"v_mov_b32 v{VX+8*t+6}, 0")
            k(f"v_mov_b32 v{VX+8*t+7}, 0")
    kv_prefetch()
    loop = "chain_loop"
    k.label(loop)
    first = k.newlabel("first"); memdone = k.newlabel("memdone"); poll = k.newlabel("poll"); pdone = k.newlabel("pdone")
    k(f"""
    s_cmp_eq_u32 s20, 0
    s_cbranch_scc1 {first}
    s_lshl_b32 s24, s20, 8
    s_add_u32 s24, s24, {WS['cnt']}
    v_mov_b32 v{T}, 0
    s_mov_b32 s27, 0
    """)
    k.label(poll)
    k(f"""
    buffer_load_dword v{T+1}, v{T}, s[8:11], s24 offen sc1
    s_waitcnt vmcnt(0)
    v_readfirstlane_b32 s26, v{T+1}
    s_cmp_ge_u32 s26, 128
    s_cbranch_scc1 {pdone}
    s_add_u32 s27, s27, 1
    s_cmp_lt_u32 s27, {spin_limit}
    s_cbranch_scc1 {poll}
    """)
    k.label(pdone)
    k(f"""
    s_mul_i32 s24, s20, 18432
    s_add_u32 s24, s24, {WS['acc']}
    """)
    for b in range(3):
        for i in range(3):
            if b*3+i < 8:
                k(f"buffer_load_dwordx2 v[{T+2*i}:{T+2*i+1}], v7, s[8:11], s24 offen offset:{(b*3+i)*512} sc1")
            else:
                k("s_add_u32 s25, s24, 4096")
                k(f"buffer_load_dwordx2 v[{T+2*i}:{T+2*i+1}], v7, s[8:11], s25 offen sc1")
        k("s_waitcnt vmcnt(0)")
        for i in range(3):
            k(f"v_cvt_pk_bf16_f32 v{T+2*i}, v{T+2*i}, v{T+2*i+1}")
        for i in range(3):
            k(f"ds_write_b32 v6, v{T+2*i} offset:{(b*3+i)*256}")
    k(f"s_branch {memdone}")
    k.label(first)
    k(f"v_lshrrev_b32 v{T+7}, 1, v7")
    for i in range(9):
        k(f"buffer_load_dword v{T+ (i%6)}, v{T+7}, s[12:15], 0 offen offset:{i*256}")
        if i % 6 == 5 or i == 8:
            k("s_waitcnt vmcnt(0)")
            lo = i - (i % 6)
            for j in range(lo, i + 1):
                k(f"ds_write_b32 v6, v{T + (j%6)} offset:{j*256}")
    k.label(memdone)
    k("s_waitcnt lgkmcnt(0)\ns_barrier")
    k(f"ds_read_b128 v[{MF}:{MF+3}], v5")
    for ks in range(18):
        cur = MF + 4 * (ks & 1); nxt = MF + 4 * ((ks + 1) & 1)
        if ks < 17:
            k(f"ds_read_b128 v[{nxt}:{nxt+3}], v5 offset:{(ks+1)*64}")
            k("s_waitcnt lgkmcnt(1)")
        else:
            k("s_waitcnt lgkmcnt(0)")
        for m in range(3):
            for t in range(2):
                f = (m * 18 + ks) * 2 + t
                c = AQ + 8 * m + 4 * t
                cin = "0" if ks == 0 else f"v[{c}:{c+3}]"
                if m < 2:
                    k(f"v_mfma_f32_16x16x32_bf16 v[{c}:{c+3}], {wreg(f)}, v[{cur}:{cur+3}], {cin}")
                else:
                    k(f"v_mfma_f32_16x16x32_bf16 v[{c}:{c+3}], v[{cur}:{cur+3}], {wreg(f)}, {cin}")
    k("s_nop 7\ns_nop 1")
    QF = MF
    KF = MF + 4
    for i in range(4):
        k(f"v_cvt_pk_bf16_f32 v{QF+i}, v{AQ+2*i}, v{AQ+2*i+1}")
        k(f"v_cvt_pk_bf16_f32 v{KF+i}, v{AQ+8+2*i}, v{AQ+8+2*i+1}")
    for t in range(2):
        k(f"v_cvt_pk_bf16_f32 v{VX+8*t}, v{AQ+16+4*t}, v{AQ+17+4*t}")
        k(f"v_cvt_pk_bf16_f32 v{VX+8*t+1}, v{AQ+18+4*t}, v{AQ+19+4*t}")
    k(f"""
    s_lshl_b32 s24, s20, 5
    s_add_u32 s24, s24, s2
    s_lshl_b32 s24, s24, 11
    s_add_u32 s25, s24, {WS['vmt']}
    s_add_u32 s24, s24, {WS['km']}
    s_mov_b64 s[50:51], exec
    s_mov_b64 exec, s[48:49]
    buffer_store_dwordx2 v[{KF}:{KF+1}], v13, s[8:11], s24 offen
    buffer_store_dwordx2 v[{KF+2}:{KF+3}], v13, s[8:11], s24 offen offset:32
    s_mov_b64 exec, s[46:47]
    buffer_store_dwordx2 v[{VX}:{VX+1}], v14, s[8:11], s25 offen
    buffer_store_dwordx2 v[{VX+8}:{VX+9}], v14, s[8:11], s25 offen offset:256
    s_mov_b64 exec, s[50:51]
    """)
    last = k.newlabel("last")
    k(f"""
    s_cmp_ge_u32 s20, {nsteps-1}
    s_cbranch_scc1 {last}
    s_waitcnt vmcnt(0)
    """)
    k(f"""
    v_mfma_f32_16x16x32_bf16 v[{AQ}:{AQ+3}], v[{KF}:{KF+3}], v[{QF}:{QF+3}], 0
    v_mfma_f32_16x16x32_bf16 v[{AQ+4}:{AQ+7}], v[{KX}:{KX+3}], v[{QF}:{QF+3}], 0
    v_mfma_f32_16x16x32_bf16 v[{AQ+8}:{AQ+11}], v[{KX+4}:{KX+7}], v[{QF}:{QF+3}], 0
    s_nop 7
    s_nop 1
    s_mul_i32 s24, s21, 1536
    v_add_u32 v{T}, s24, v10
    s_mov_b64 exec, s[48:49]
    ds_write_b128 v{T}, v[{AQ}:{AQ+3}]
    ds_write_b128 v{T}, v[{AQ+4}:{AQ+7}] offset:16
    ds_write_b128 v{T}, v[{AQ+8}:{AQ+11}] offset:32
    s_mov_b64 exec, s[50:51]
    s_waitcnt lgkmcnt(0)
    s_barrier
    """)
    k(f"""
    ds_read_b128 v[{AQ}:{AQ+3}], v10
    ds_read_b128 v[{AQ+4}:{AQ+7}], v10 offset:16
    ds_read_b128 v[{AQ+8}:{AQ+11}], v10 offset:32
    """)
    for w in range(1, 4):
        k(f"""
        ds_read_b128 v[{AQ+12}:{AQ+15}], v10 offset:{w*1536}
        ds_read_b128 v[{AQ+16}:{AQ+19}], v10 offset:{w*1536+16}
        ds_read_b128 v[{AQ+20}:{AQ+23}], v10 offset:{w*1536+32}
        s_waitcnt lgkmcnt(0)
        """)
        for i in range(12):
            k(f"v_add_f32 v{AQ+i}, v{AQ+i}, v{AQ+12+i}")
    for i in range(0, 12, 2):
        k(f"""
        v_cvt_pk_bf16_f32 v{T}, v{AQ+i}, v{AQ+i+1}
        v_lshlrev_b32 v{AQ+i}, 16, v{T}
        v_and_b32 v{AQ+i+1}, 0xffff0000, v{T}
        v_mul_f32 v{AQ+i}, s45, v{AQ+i}
        v_mul_f32 v{AQ+i+1}, s45, v{AQ+i+1}
        v_cvt_pk_bf16_f32 v{T}, v{AQ+i}, v{AQ+i+1}
        v_lshlrev_b32 v{AQ+i}, 16, v{T}
        v_and_b32 v{AQ+i+1}, 0xffff0000, v{T}
        """)
    k(f"v_mov_b32 v{T+1}, 0xff800000")
    for i in range(4):
        k(f"v_cndmask_b32 v{AQ+i}, v{T+1}, v{AQ+i}, s[46:47]")
    k(f"""
    v_max3_f32 v{T}, v{AQ}, v{AQ+1}, v{AQ+2}
    v_max3_f32 v{T}, v{T}, v{AQ+3}, v{AQ+4}
    v_max3_f32 v{T}, v{T}, v{AQ+5}, v{AQ+6}
    v_max3_f32 v{T}, v{T}, v{AQ+7}, v{AQ+8}
    v_max3_f32 v{T}, v{T}, v{AQ+9}, v{AQ+10}
    v_max_f32 v{T}, v{T}, v{AQ+11}
    v_mov_b32 v{T+1}, v{T}
    s_nop 1
    v_permlane32_swap_b32 v{T}, v{T+1}
    s_nop 1
    v_max_f32 v{T}, v{T}, v{T+1}
    v_mov_b32 v{T+1}, v{T}
    s_nop 1
    v_permlane16_swap_b32 v{T}, v{T+1}
    s_nop 1
    v_max_f32 v{T}, v{T}, v{T+1}
    """)
    for i in range(12):
        k(f"""
        v_sub_f32 v{AQ+i}, v{AQ+i}, v{T}
        v_mul_f32 v{AQ+i}, s44, v{AQ+i}
        v_exp_f32 v{AQ+i}, v{AQ+i}
        """)
    k(f"s_nop 0\nv_add_f32 v{T}, v{AQ}, v{AQ+1}")
    for i in range(2, 12):
        k(f"v_add_f32 v{T}, v{T}, v{AQ+i}")
    k(f"""
    v_mov_b32 v{T+1}, v{T}
    s_nop 1
    v_permlane32_swap_b32 v{T}, v{T+1}
    s_nop 1
    v_add_f32 v{T}, v{T}, v{T+1}
    v_mov_b32 v{T+1}, v{T}
    s_nop 1
    v_permlane16_swap_b32 v{T}, v{T+1}
    s_nop 1
    v_add_f32 v{T}, v{T}, v{T+1}
    v_rcp_f32 v{T}, v{T}
    s_nop 0
    """)
    for i in range(12):
        k(f"v_mul_f32 v{AQ+i}, v{AQ+i}, v{T}")
    for i in range(6):
        k(f"v_cvt_pk_bf16_f32 v{MF+i}, v{AQ+2*i}, v{AQ+2*i+1}")
    k(f"v_mov_b32 v{MF+6}, 0\nv_mov_b32 v{MF+7}, 0\ns_nop 1")
    for t in range(2):
        k(f"v_mfma_f32_16x16x32_bf16 v[{AQ+4*t}:{AQ+4*t+3}], v[{VX+8*t}:{VX+8*t+3}], v[{MF}:{MF+3}], 0")
    for t in range(2):
        k(f"v_mfma_f32_16x16x32_bf16 v[{AQ+4*t}:{AQ+4*t+3}], v[{VX+8*t+4}:{VX+8*t+7}], v[{MF+4}:{MF+7}], v[{AQ+4*t}:{AQ+4*t+3}]")
    k("s_nop 7\ns_nop 1")
    for i in range(4):
        k(f"v_cvt_pk_bf16_f32 v{T+i}, v{AQ+2*i}, v{AQ+2*i+1}")
    k(f"""
    s_lshl_b32 s24, s21, 10
    s_add_u32 s24, s24, {LDS_O}
    v_add_u32 v{T+4}, s24, v11
    ds_write_b128 v{T+4}, v[{T}:{T+3}]
    """)
    k("s_add_u32 s20, s20, 1")
    kv_prefetch()
    k("s_sub_u32 s20, s20, 1")
    k("s_waitcnt lgkmcnt(0)\ns_barrier")
    k(f"v_add_u32 v{T+6}, {LDS_O}, v11")
    for i in range(4):
        k(f"ds_read_b128 v[{AQ+4*i}:{AQ+4*i+3}], v{T+6} offset:{i*1024}")
    k(f"s_mul_i32 s24, s21, {9*4096}")
    k(f"v_add_u32 v{T+7}, s24, v11")
    k(f"""
    s_add_u32 s24, s20, 1
    s_mul_i32 s24, s24, 18432
    s_add_u32 s24, s24, {WS['acc']}
    s_add_u32 s25, s24, 2304
    s_add_u32 s26, s24, 4608
    s_add_u32 s27, s24, 6912
    """)
    BF = 56
    OA = 64
    for nt in range(9):
        oa = OA + 4 * (nt & 1)
        for kp in range(4):
            bf = BF + 4 * (kp & 1)
            k(f"ds_read_b128 v[{bf}:{bf+3}], v{T+7} offset:{nt*4096 + kp*1024}")
            k("s_waitcnt lgkmcnt(0)")
            cin = "0" if kp == 0 else f"v[{oa}:{oa+3}]"
            k(f"v_mfma_f32_16x16x32_bf16 v[{oa}:{oa+3}], v[{AQ+4*kp}:{AQ+4*kp+3}], v[{bf}:{bf+3}], {cin}")
        k("s_nop 7\ns_nop 1")
        k("s_mov_b64 exec, s[46:47]")
        for r in range(4):
            k(f"buffer_atomic_add_f32 v{oa+r}, v12, s[8:11], s{24+r} offen offset:{nt*64}")
        k("s_mov_b64 exec, s[50:51]")
    k(f"""
    s_waitcnt vmcnt(0)
    s_add_u32 s24, s20, 1
    s_lshl_b32 s24, s24, 8
    s_add_u32 s24, s24, {WS['cnt']}
    v_mov_b32 v{T}, 0
    v_mov_b32 v{T+1}, 1
    s_mov_b64 exec, 1
    buffer_atomic_add v{T+1}, v{T}, s[8:11], s24 offen
    s_mov_b64 exec, s[50:51]
    s_add_u32 s20, s20, 1
    s_branch {loop}
    """)
    k.label(last)
    k("s_waitcnt vmcnt(0)")
    k.label(end)
    return k.text(512, 64, 256)
```

```python
from asmlib import *
import asmlib

def gen_gemm(name, M, N, K, BN, a_src, b_sel, lda, ldb, swap, epi, nblk_total=None, interleave_gu=False):
    BM, BK = 128, 64
    WM, WN = 64, BN // 2
    MT, NT = WM // 16, WN // 16
    KT = K // BK
    SA = 144
    SB = BN * 2 + 32
    ABYTES = BM * SA
    BBYTES = BK * SB
    BUF = ABYTES + BBYTES
    TOG = 1 << (BUF - 1).bit_length()
    NB = N // BN if nblk_total is None else nblk_total
    MB = M // BM
    k = asmlib.K(name)
    end = name + "_end"
    k(f"""
    s_cmp_ge_u32 s2, {NB*MB}
    s_cbranch_scc1 {end}
    s_load_dwordx2 s[4:5], s[0:1], {a_src[1] if a_src[0]=='ka' else 120}
    s_load_dwordx2 s[8:9], s[0:1], 120
    s_and_b32 s22, s2, {MB-1}
    s_lshr_b32 s23, s2, {MB.bit_length()-1}
    """)
    b_sel(k)
    k("s_waitcnt lgkmcnt(0)")
    srd(k, 12, 4, 5, M * lda, a_src[1] if a_src[0] == 'ws' else 0)
    srd(k, 16, 10, 11, K * ldb)
    if interleave_gu:
        srd(k, 36, 6, 7, K * ldb)
    k(f"""
    v_and_b32 v1, 63, v0
    v_lshrrev_b32 v2, 6, v0
    v_and_b32 v3, 15, v0
    v_bfe_u32 v4, v0, 4, 2
    """)
    k(f"""
    v_lshrrev_b32 v5, 3, v0
    v_and_b32 v6, 7, v0
    s_mul_i32 s25, s22, {BM*lda}
    v_mul_u32_u24 v7, {lda}, v5
    v_lshl_add_u32 v7, v6, 4, v7
    v_add_u32 v7, s25, v7
    v_mul_u32_u24 v8, {SA}, v5
    v_lshl_add_u32 v8, v6, 4, v8
    """)
    LPR = BN * 2 // 16
    RPP = 256 // LPR
    NPB = BK // RPP
    sh = LPR.bit_length() - 1
    k(f"""
    v_lshrrev_b32 v9, {sh}, v0
    v_and_b32 v10, {LPR-1}, v0
    v_mul_u32_u24 v11, {ldb}, v9
    v_lshl_add_u32 v11, v10, 4, v11
    v_add_u32 v11, s24, v11
    """)
    if interleave_gu:
        k(f"""
        v_mul_u32_u24 v11, {ldb}, v9
        v_lshrrev_b32 v12, 2, v10
        v_lshlrev_b32 v12, 5, v12
        v_and_b32 v13, 1, v10
        v_lshl_add_u32 v12, v13, 4, v12
        v_add_u32 v11, v11, v12
        v_add_u32 v11, s24, v11
        v_bfe_u32 v12, v10, 1, 1
        v_cmp_eq_u32 s[40:41], 1, v12
        """)
    for i in range(NPB):
        k(f"""
        v_add_u32 v12, {RPP*i}, v9
        v_and_b32 v13, 0xffffffe0, v12
        v_bfe_u32 v14, v12, 2, 1
        v_lshl_add_u32 v13, v14, 4, v13
        v_bfe_u32 v14, v12, 3, 2
        v_lshl_add_u32 v13, v14, 2, v13
        v_and_b32 v14, 3, v12
        v_add_u32 v13, v13, v14
        v_mul_u32_u24 v13, {SB}, v13
        v_lshl_add_u32 v13, v10, 4, v13
        v_add_u32 v{16+i}, {ABYTES}, v13
        """)
    k(f"""
    v_lshrrev_b32 v12, 1, v2
    v_and_b32 v13, 1, v2
    v_lshlrev_b32 v14, 6, v12
    v_add_u32 v14, v14, v3
    v_mul_u32_u24 v14, {SA}, v14
    v_lshl_add_u32 v20, v4, 4, v14
    """)
    k(f"""
    v_bfe_u32 v14, v0, 2, 2
    v_and_b32 v15, 3, v0
    v_lshl_add_u32 v14, v4, 2, v14
    v_mul_u32_u24 v14, {SB}, v14
    v_mul_u32_u24 v21, {WN}, v13
    v_lshl_add_u32 v21, v15, 2, v21
    v_lshl_add_u32 v21, v21, 1, v14
    v_add_u32 v21, {ABYTES}, v21
    """)
    ACC = 64
    for i in range(MT * NT * 4):
        k(f"v_mov_b32 v{ACC+i}, 0")
    STA = 32
    STB = 48
    FA = 128
    FB = 144
    def gload():
        for i in range(4):
            k(f"buffer_load_dwordx4 v[{STA+4*i}:{STA+4*i+3}], v7, s[12:15], s26 offen offset:0" if i == 0 else
              f"buffer_load_dwordx4 v[{STA+4*i}:{STA+4*i+3}], v{24+i}, s[12:15], s26 offen")
        if interleave_gu:
            k("s_not_b64 exec, s[40:41]")
        for i in range(NPB):
            k(f"buffer_load_dwordx4 v[{STB+4*i}:{STB+4*i+3}], v{28+i}, s[16:19], s27 offen" if i else
              f"buffer_load_dwordx4 v[{STB}:{STB+3}], v11, s[16:19], s27 offen")
        if interleave_gu:
            k("s_mov_b64 exec, s[40:41]")
            for i in range(NPB):
                k(f"buffer_load_dwordx4 v[{STB+4*i}:{STB+4*i+3}], v{28+i}, s[36:39], s27 offen" if i else
                  f"buffer_load_dwordx4 v[{STB}:{STB+3}], v11, s[36:39], s27 offen")
            k("s_mov_b64 exec, -1")
    for i in range(1, 4):
        k(f"v_add_u32 v{24+i}, {32*lda*i}, v7")
    for i in range(1, NPB):
        k(f"v_add_u32 v{28+i}, {RPP*ldb*i}, v11")
    def lds_write():
        for i in range(4):
            k(f"ds_write_b128 v8, v[{STA+4*i}:{STA+4*i+3}] offset:{32*SA*i}")
        for i in range(NPB):
            k(f"ds_write_b128 v{16+i}, v[{STB+4*i}:{STB+4*i+3}]")
    k("s_mov_b32 s26, 0\ns_mov_b32 s27, 0\ns_mov_b32 s28, 0")
    gload()
    k("s_waitcnt vmcnt(0)")
    lds_write()
    k("s_waitcnt lgkmcnt(0)\ns_barrier")
    loop = k.newlabel("loop")
    k.label(loop)
    k(f"""
    s_add_u32 s26, s26, {BK*2}
    s_add_u32 s27, s27, {BK*ldb}
    s_add_u32 s28, s28, 1
    """)
    gload()
    for ks in range(2):
        for mt in range(MT):
            k(f"ds_read_b128 v[{FA+4*mt}:{FA+4*mt+3}], v20 offset:{mt*16*SA + ks*64}")
        for nt in range(NT):
            k(f"ds_read_b64_tr_b16 v[{FB+4*nt}:{FB+4*nt+1}], v21 offset:{ks*32*SB + nt*32}")
            k(f"ds_read_b64_tr_b16 v[{FB+4*nt+2}:{FB+4*nt+3}], v21 offset:{ks*32*SB + 16*SB + nt*32}")
        k("s_waitcnt lgkmcnt(0)")
        for mt in range(MT):
            for nt in range(NT):
                a = f"v[{FA+4*mt}:{FA+4*mt+3}]"; b = f"v[{FB+4*nt}:{FB+4*nt+3}]"
                c = ACC + 4 * (mt * NT + nt)
                if swap:
                    a, b = b, a
                k(f"v_mfma_f32_16x16x32_bf16 v[{c}:{c+3}], {a}, {b}, v[{c}:{c+3}]")
    skip = k.newlabel("skip")
    k(f"""
    v_xor_b32 v8, {TOG}, v8
    v_xor_b32 v20, {TOG}, v20
    v_xor_b32 v21, {TOG}, v21
    """)
    for i in range(NPB):
        k(f"v_xor_b32 v{16+i}, {TOG}, v{16+i}")
    k(f"""
    s_cmp_ge_u32 s28, {KT}
    s_cbranch_scc1 {skip}
    s_waitcnt vmcnt(0)
    """)
    lds_write()
    k("s_waitcnt lgkmcnt(0)\ns_barrier")
    k(f"s_branch {loop}")
    k.label(skip)
    k("s_waitcnt vmcnt(0)\ns_nop 7\ns_nop 7")
    ctx = dict(MT=MT, NT=NT, ACC=ACC, WM=WM, WN=WN, BM=BM, BN=BN)
    epi(k, ctx)
    k.label(end)
    return k.text(160, 48, 160), TOG + BUF

def epi_store_swapped(dst_off, ldc, ncols_total):
    def f(k, c):
        srd(k, 32, 8, 9, ncols_total, dst_off)
        k(f"""
        v_lshrrev_b32 v12, 1, v2
        v_and_b32 v13, 1, v2
        s_lshl_b32 s25, s22, 7
        v_lshl_add_u32 v14, v12, 6, v3
        v_add_u32 v14, s25, v14
        v_mul_u32_u24 v14, {ldc}, v14
        v_mul_u32_u24 v15, {c['WN']}, v13
        v_lshl_add_u32 v15, v4, 2, v15
        v_lshl_add_u32 v14, v15, 1, v14
        v_add_u32 v14, s24, v14
        v_add_u32 v14, s29, v14
        """)
        for mt in range(c['MT']):
            for nt in range(c['NT']):
                a = c['ACC'] + 4 * (mt * c['NT'] + nt)
                k(f"""
                v_cvt_pk_bf16_f32 v{a}, v{a}, v{a+1}
                v_cvt_pk_bf16_f32 v{a+1}, v{a+2}, v{a+3}
                """)
            for nt in range(c['NT']):
                a = c['ACC'] + 4 * (mt * c['NT'] + nt)
                k(f"buffer_store_dwordx2 v[{a}:{a+1}], v14, s[32:35], 0 offen offset:{nt*32}")
            k(f"v_add_u32 v14, {16*ldc}, v14")
    return f

def epi_store_vt(dst_off):
    def f(k, c):
        srd(k, 32, 8, 9, 2048 * 8192, dst_off)
        k(f"""
        v_lshrrev_b32 v12, 1, v2
        v_and_b32 v13, 1, v2
        s_lshl_b32 s25, s22, 2
        v_lshlrev_b32 v14, 1, v12
        v_add_u32 v14, s25, v14
        v_lshlrev_b32 v14, 18, v14
        v_mul_u32_u24 v15, {c['WN']}, v13
        v_add_u32 v15, v15, v3
        s_lshr_b32 s25, s24, 1
        v_add_u32 v15, s25, v15
        v_lshl_add_u32 v14, v15, 6, v14
        v_lshl_add_u32 v14, v4, 3, v14
        """)
        for mt in range(c['MT']):
            for nt in range(c['NT']):
                a = c['ACC'] + 4 * (mt * c['NT'] + nt)
                k(f"""
                v_cvt_pk_bf16_f32 v{a}, v{a}, v{a+1}
                v_cvt_pk_bf16_f32 v{a+1}, v{a+2}, v{a+3}
                """)
            for nt in range(c['NT']):
                a = c['ACC'] + 4 * (mt * c['NT'] + nt)
                off = (mt // 2) * 262144 + (mt % 2) * 32 + nt * 16 * 64
                k(f"v_add_u32 v16, {off}, v14")
                k(f"buffer_store_dwordx2 v[{a}:{a+1}], v16, s[32:35], 0 offen")
    return f

def bsel_qk(k):
    k("""
    s_load_dwordx2 s[10:11], s[0:1], 16
    s_load_dwordx2 s[6:7], s[0:1], 24
    s_waitcnt lgkmcnt(0)
    s_cmp_ge_u32 s23, 32
    s_cselect_b32 s10, s6, s10
    s_cselect_b32 s11, s7, s11
    s_and_b32 s24, s23, 31
    s_lshl_b32 s24, s24, 8
    s_lshr_b32 s29, s23, 5
    s_lshl_b32 s29, s29, 24
    """)
def bsel_v(k):
    k("""
    s_load_dwordx2 s[10:11], s[0:1], 32
    s_lshl_b32 s24, s23, 8
    """)


def bsel_ptr(ka, bn_bytes_shift):
    def f(k):
        k(f"""
        s_load_dwordx2 s[10:11], s[0:1], {ka}
        s_mul_i32 s24, s23, {bn_bytes_shift}
        s_mov_b32 s29, 0
        """)
    return f
def bsel_gu(k):
    k("""
    s_load_dwordx2 s[10:11], s[0:1], 64
    s_load_dwordx2 s[6:7], s[0:1], 72
    s_lshl_b32 s24, s23, 7
    s_mov_b32 s29, 0
    """)

def epi_resid(res_src, gate_idx, dst, ncolblk):
    def f(k, c):
        k(f"s_load_dwordx2 s[4:5], s[0:1], {res_src[1] if res_src[0]=='ka' else 120}")
        k(f"s_load_dwordx2 s[6:7], s[0:1], {dst[1] if dst[0]=='ka' else 120}")
        k("s_waitcnt lgkmcnt(0)")
        srd(k, 32, 4, 5, 2048 * 1152, res_src[1] if res_src[0] == 'ws' else 0)
        srd(k, 36, 6, 7, 2048 * 1152, dst[1] if dst[0] == 'ws' else 0)
        srd(k, 40, 8, 9, 3456 * 4, WS['mod'])
        k(f"""
        v_lshrrev_b32 v12, 1, v2
        v_and_b32 v13, 1, v2
        s_lshl_b32 s25, s22, 7
        v_lshl_add_u32 v14, v12, 6, v3
        v_add_u32 v14, s25, v14
        v_mul_u32_u24 v14, 1152, v14
        v_mul_u32_u24 v15, {c['WN']}, v13
        v_lshl_add_u32 v15, v4, 2, v15
        s_mul_i32 s25, s23, {c['BN']}
        v_add_u32 v15, s25, v15
        v_lshl_add_u32 v14, v15, 1, v14
        v_lshlrev_b32 v15, 2, v15
        v_add_u32 v15, {gate_idx*2304}, v15
        """)
        for nt in range(c['NT']):
            k(f"buffer_load_dwordx4 v[{16+4*nt}:{19+4*nt}], v15, s[40:43], 0 offen offset:{nt*64}")
        for mt in range(c['MT']):
            for nt in range(c['NT']):
                k(f"buffer_load_dwordx2 v[{32+2*nt}:{33+2*nt}], v14, s[32:35], 0 offen offset:{nt*32}")
            k("s_waitcnt vmcnt(0)")
            for nt in range(c['NT']):
                a = c['ACC'] + 4 * (mt * c['NT'] + nt)
                g = 16 + 4 * nt; x = 32 + 2 * nt
                k(f"""
                v_cvt_pk_bf16_f32 v48, v{a}, v{a+1}
                v_cvt_pk_bf16_f32 v49, v{a+2}, v{a+3}
                v_lshlrev_b32 v{a}, 16, v48
                v_and_b32 v{a+1}, 0xffff0000, v48
                v_lshlrev_b32 v{a+2}, 16, v49
                v_and_b32 v{a+3}, 0xffff0000, v49
                v_mul_f32 v{a}, v{a}, v{g}
                v_mul_f32 v{a+1}, v{a+1}, v{g+1}
                v_mul_f32 v{a+2}, v{a+2}, v{g+2}
                v_mul_f32 v{a+3}, v{a+3}, v{g+3}
                v_cvt_pk_bf16_f32 v48, v{a}, v{a+1}
                v_cvt_pk_bf16_f32 v49, v{a+2}, v{a+3}
                v_lshlrev_b32 v{a}, 16, v48
                v_and_b32 v{a+1}, 0xffff0000, v48
                v_lshlrev_b32 v{a+2}, 16, v49
                v_and_b32 v{a+3}, 0xffff0000, v49
                v_lshlrev_b32 v50, 16, v{x}
                v_and_b32 v51, 0xffff0000, v{x}
                v_lshlrev_b32 v52, 16, v{x+1}
                v_and_b32 v53, 0xffff0000, v{x+1}
                v_add_f32 v{a}, v{a}, v50
                v_add_f32 v{a+1}, v{a+1}, v51
                v_add_f32 v{a+2}, v{a+2}, v52
                v_add_f32 v{a+3}, v{a+3}, v53
                v_cvt_pk_bf16_f32 v{a}, v{a}, v{a+1}
                v_cvt_pk_bf16_f32 v{a+1}, v{a+2}, v{a+3}
                """)
            for nt in range(c['NT']):
                a = c['ACC'] + 4 * (mt * c['NT'] + nt)
                k(f"buffer_store_dwordx2 v[{a}:{a+1}], v14, s[36:39], 0 offen offset:{nt*32}")
            k(f"v_add_u32 v14, {16*1152}, v14")
    return f

def epi_gu(dst_off):
    def f(k, c):
        srd(k, 32, 8, 9, 2048 * 9216, dst_off)
        k(f"""
        v_lshrrev_b32 v12, 1, v2
        v_and_b32 v13, 1, v2
        s_lshl_b32 s25, s22, 7
        v_lshl_add_u32 v14, v12, 6, v3
        v_add_u32 v14, s25, v14
        v_mul_u32_u24 v14, 9216, v14
        v_lshlrev_b32 v15, 5, v13
        v_lshl_add_u32 v15, v4, 2, v15
        s_lshl_b32 s25, s23, 6
        v_add_u32 v15, s25, v15
        v_lshl_add_u32 v14, v15, 1, v14
        """)
        for mt in range(c['MT']):
            for p in range(c['NT'] // 2):
                a = c['ACC'] + 4 * (mt * c['NT'] + 2 * p); u = a + 4
                k(f"""
                v_cvt_pk_bf16_f32 v48, v{a}, v{a+1}
                v_cvt_pk_bf16_f32 v49, v{a+2}, v{a+3}
                v_cvt_pk_bf16_f32 v50, v{u}, v{u+1}
                v_cvt_pk_bf16_f32 v51, v{u+2}, v{u+3}
                v_lshlrev_b32 v{a}, 16, v48
                v_and_b32 v{a+1}, 0xffff0000, v48
                v_lshlrev_b32 v{a+2}, 16, v49
                v_and_b32 v{a+3}, 0xffff0000, v49
                v_lshlrev_b32 v{u}, 16, v50
                v_and_b32 v{u+1}, 0xffff0000, v50
                v_lshlrev_b32 v{u+2}, 16, v51
                v_and_b32 v{u+3}, 0xffff0000, v51
                v_max_f32 v{a}, 0, v{a}
                v_max_f32 v{a+1}, 0, v{a+1}
                v_max_f32 v{a+2}, 0, v{a+2}
                v_max_f32 v{a+3}, 0, v{a+3}
                v_mul_f32 v{a}, v{a}, v{u}
                v_mul_f32 v{a+1}, v{a+1}, v{u+1}
                v_mul_f32 v{a+2}, v{a+2}, v{u+2}
                v_mul_f32 v{a+3}, v{a+3}, v{u+3}
                v_cvt_pk_bf16_f32 v{a}, v{a}, v{a+1}
                v_cvt_pk_bf16_f32 v{a+1}, v{a+2}, v{a+3}
                """)
            for p in range(c['NT'] // 2):
                a = c['ACC'] + 4 * (mt * c['NT'] + 2 * p)
                k(f"buffer_store_dwordx2 v[{a}:{a+1}], v14, s[32:35], 0 offen offset:{p*32}")
            k(f"v_add_u32 v14, {16*9216}, v14")
    return f
```

```python
from asmlib import *

def gen_mod():
    k = K("mod_kernel")
    k("""
    s_cmp_ge_u32 s2, 27
    s_cbranch_scc1 mod_kernel_end
    s_load_dwordx2 s[4:5], s[0:1], 88
    s_load_dwordx2 s[6:7], s[0:1], 96
    s_load_dwordx2 s[8:9], s[0:1], 120
    v_and_b32 v1, 63, v0
    v_lshrrev_b32 v2, 6, v0
    s_waitcnt lgkmcnt(0)
    """)
    srd(k, 12, 4, 5, 1152)
    srd(k, 16, 6, 7, 576 * 3456 * 2)
    srd(k, 20, 8, 9, 3456 * 4, WS["mod"])
    k("""
    v_mul_u32_u24 v3, 144, v2
    v_add_u32 v4, v3, v1
    v_lshlrev_b32 v4, 1, v4
    buffer_load_ushort v10, v4, s[12:15], 0 offen
    buffer_load_ushort v11, v4, s[12:15], 0 offen offset:128
    buffer_load_ushort v12, v4, s[12:15], 0 offen offset:256
    s_mov_b32 s24, 0xbfb8aa3b
    s_waitcnt vmcnt(0)
    """)
    for r in (10, 11, 12):
        k(f"""
        v_lshlrev_b32 v{r}, 16, v{r}
        v_mul_f32 v13, s24, v{r}
        v_exp_f32 v13, v13
        s_nop 0
        v_add_f32 v13, 1.0, v13
        v_rcp_f32 v13, v13
        s_nop 0
        v_mul_f32 v13, v13, v{r}
        v_cvt_pk_bf16_f32 v13, v13, v13
        v_lshlrev_b32 v{r}, 16, v13
        """)
    k("""
    s_lshl_b32 s3, s2, 8
    v_lshlrev_b32 v5, 2, v1
    v_add_u32 v5, s3, v5
    v_readfirstlane_b32 s25, v3
    v_mov_b32 v6, 0
    v_mov_b32 v7, 0
    s_nop 3
    s_mul_i32 s25, s25, 6912
    """)
    for b in range(9):
        for i in range(16):
            k(f"s_add_u32 s{30+i}, s25, {(b*16+i)*6912}")
        k("s_nop 0")
        for i in range(16):
            k(f"buffer_load_dword v{20+i}, v5, s[16:19], s{30+i} offen")
        for i in range(16):
            kk = b * 16 + i
            k(f"v_readlane_b32 s{50+i}, v{10 + kk // 64}, {kk % 64}")
        k("s_waitcnt vmcnt(0)")
        for i in range(16):
            k(f"""
            v_lshlrev_b32 v40, 16, v{20+i}
            v_and_b32 v41, 0xffff0000, v{20+i}
            v_fmac_f32 v6, s{50+i}, v40
            v_fmac_f32 v7, s{50+i}, v41
            """)
    k("""
    v_lshlrev_b32 v8, 3, v0
    ds_write_b64 v8, v[6:7]
    s_waitcnt lgkmcnt(0)
    s_barrier
    v_cmp_gt_u32 vcc, 64, v0
    s_and_saveexec_b64 s[26:27], vcc
    s_cbranch_execz mod_kernel_end
    ds_read_b64 v[6:7], v8
    ds_read_b64 v[10:11], v8 offset:512
    ds_read_b64 v[12:13], v8 offset:1024
    ds_read_b64 v[14:15], v8 offset:1536
    s_waitcnt lgkmcnt(0)
    v_add_f32 v6, v6, v10
    v_add_f32 v7, v7, v11
    v_add_f32 v6, v6, v12
    v_add_f32 v7, v7, v13
    v_add_f32 v6, v6, v14
    v_add_f32 v7, v7, v15
    v_cvt_pk_bf16_f32 v6, v6, v7
    v_and_b32 v7, 0xffff0000, v6
    v_lshlrev_b32 v6, 16, v6
    s_lshl_b32 s3, s2, 9
    v_lshlrev_b32 v9, 3, v0
    v_add_u32 v9, s3, v9
    buffer_store_dwordx2 v[6:7], v9, s[20:23], 0 offen
    """)
    k.label("mod_kernel_end")
    return k.text(48, 72, 48)

def wave_sum(k, v, tmp, sdst):
    for off in (0x041F, 0x081F, 0x101F, 0x201F, 0x401F):
        k(f"""
        ds_swizzle_b32 v{tmp}, v{v} offset:{off}
        s_waitcnt lgkmcnt(0)
        v_add_f32 v{v}, v{v}, v{tmp}
        """)
    k(f"""
    s_nop 0
    v_readlane_b32 s{sdst}, v{v}, 32
    s_nop 1
    v_add_f32 v{v}, s{sdst}, v{v}
    s_nop 0
    v_readlane_b32 s{sdst}, v{v}, 0
    s_nop 1
    """)

def gen_ln(name, src_from_ws, src_off, scale_idx, shift_idx, dst_off):
    k = K(name)
    end = name + "_end"
    k(f"""
    s_cmp_ge_u32 s2, 512
    s_cbranch_scc1 {end}
    s_load_dwordx2 s[4:5], s[0:1], {120 if src_from_ws else 0}
    s_load_dwordx2 s[8:9], s[0:1], 120
    v_and_b32 v1, 63, v0
    v_lshrrev_b32 v2, 6, v0
    s_waitcnt lgkmcnt(0)
    """)
    srd(k, 12, 4, 5, 2048 * 1152, src_off)
    srd(k, 16, 8, 9, 3456 * 4, WS["mod"])
    srd(k, 20, 8, 9, 2048 * 1152, dst_off)
    k(f"""
    s_lshl_b32 s3, s2, 2
    v_add_u32 v3, s3, v2
    v_mul_u32_u24 v3, 1152, v3
    v_lshlrev_b32 v4, 2, v1
    v_add_u32 v3, v3, v4
    v_lshlrev_b32 v5, 3, v1
    v_add_u32 v6, {scale_idx*2304}, v5
    v_add_u32 v7, {shift_idx*2304}, v5
    v_mov_b32 v14, 0
    v_mov_b32 v24, 0
    v_mov_b32 v25, 0
    v_mov_b32 v34, 0
    v_mov_b32 v35, 0
    """)
    for i in range(4):
        k(f"buffer_load_dword v{10+i}, v3, s[12:15], 0 offen offset:{i*256}")
        k(f"buffer_load_dwordx2 v[{20+2*i}:{21+2*i}], v6, s[16:19], 0 offen offset:{i*512}")
        k(f"buffer_load_dwordx2 v[{30+2*i}:{31+2*i}], v7, s[16:19], 0 offen offset:{i*512}")
    k(f"""
    v_cmp_gt_u32 vcc, 32, v1
    s_and_saveexec_b64 s[26:27], vcc
    buffer_load_dword v14, v3, s[12:15], 0 offen offset:1024
    buffer_load_dwordx2 v[28:29], v6, s[16:19], 0 offen offset:2048
    buffer_load_dwordx2 v[38:39], v7, s[16:19], 0 offen offset:2048
    s_mov_b64 exec, s[26:27]
    s_waitcnt vmcnt(0)
    """)
    for i in range(5):
        k(f"v_lshlrev_b32 v{40+2*i}, 16, v{10+i}")
        k(f"v_and_b32 v{41+2*i}, 0xffff0000, v{10+i}")
    k("v_add_f32 v50, v40, v41")
    for i in range(2, 10):
        k(f"v_add_f32 v50, v50, v{40+i}")
    wave_sum(k, 50, 51, 30)
    k("""
    v_mov_b32 v51, 0x3ae38e39
    v_mul_f32 v51, s30, v51
    """)
    k("v_mov_b32 v50, 0")
    for i in range(8):
        k(f"""
        v_sub_f32 v52, v{40+i}, v51
        v_fmac_f32 v50, v52, v52
        """)
    k("""
    v_sub_f32 v52, v48, v51
    v_mul_f32 v52, v52, v52
    v_sub_f32 v53, v49, v51
    v_fmac_f32 v52, v53, v53
    v_cmp_gt_u32 vcc, 32, v1
    v_cndmask_b32 v52, 0, v52, vcc
    v_add_f32 v50, v50, v52
    """)
    wave_sum(k, 50, 52, 31)
    k("""
    v_mov_b32 v52, 0x3ae38e39
    v_mul_f32 v52, s31, v52
    v_cvt_pk_bf16_f32 v52, v52, v51
    v_and_b32 v51, 0xffff0000, v52
    v_lshlrev_b32 v52, 16, v52
    v_add_f32 v52, 0x3727c5ac, v52
    v_cvt_pk_bf16_f32 v52, v52, v52
    v_lshlrev_b32 v52, 16, v52
    v_sqrt_f32 v52, v52
    s_nop 0
    v_cvt_pk_bf16_f32 v52, v52, v52
    v_lshlrev_b32 v52, 16, v52
    v_rcp_f32 v52, v52
    s_nop 0
    """)
    for i in range(10):
        sc = 20 + i; sh = 30 + i; x = 40 + i
        k(f"""
        v_sub_f32 v{x}, v{x}, v51
        v_cvt_pk_bf16_f32 v{x}, v{x}, v{x}
        v_lshlrev_b32 v{x}, 16, v{x}
        v_mul_f32 v{x}, v{x}, v52
        v_cvt_pk_bf16_f32 v{x}, v{x}, v{x}
        v_lshlrev_b32 v{x}, 16, v{x}
        v_add_f32 v{sc}, 1.0, v{sc}
        v_cvt_pk_bf16_f32 v{sc}, v{sc}, v{sc}
        v_lshlrev_b32 v{sc}, 16, v{sc}
        v_mul_f32 v{x}, v{x}, v{sc}
        v_cvt_pk_bf16_f32 v{x}, v{x}, v{x}
        v_lshlrev_b32 v{x}, 16, v{x}
        v_add_f32 v{x}, v{x}, v{sh}
        """)
    for i in range(5):
        k(f"v_cvt_pk_bf16_f32 v{10+i}, v{40+2*i}, v{41+2*i}")
    for i in range(4):
        k(f"buffer_store_dword v{10+i}, v3, s[20:23], 0 offen offset:{i*256}")
    k(f"""
    v_cmp_gt_u32 vcc, 32, v1
    s_and_saveexec_b64 s[26:27], vcc
    buffer_store_dword v14, v3, s[20:23], 0 offen offset:1024
    """)
    k.label(end)
    return k.text(64, 40, 64)

def gen_zero():
    k = K("zero_kernel")
    n = WS['acc'] + 64 * NREP * 18432 - WS['cnt']
    nwg = (n + 4095) // 4096
    k(f"""
    s_cmp_ge_u32 s2, {nwg}
    s_cbranch_scc1 zero_kernel_end
    s_load_dwordx2 s[8:9], s[0:1], 120
    s_waitcnt lgkmcnt(0)
    """)
    srd(k, 12, 8, 9, n, WS['cnt'])
    k("""
    s_lshl_b32 s3, s2, 12
    v_lshlrev_b32 v1, 4, v0
    v_add_u32 v1, s3, v1
    v_mov_b32 v4, 0
    v_mov_b32 v5, 0
    v_mov_b32 v6, 0
    v_mov_b32 v7, 0
    buffer_store_dwordx4 v[4:7], v1, s[12:15], 0 offen
    """)
    k.label("zero_kernel_end")
    return k.text(8, 24, 8), nwg
```

```python
import sys
sys.path.insert(0, "dev")
from asmlib import *
import k_small, k_gemm, k_chain, k_attn
from gen import build, check
def make(path):
    kernels = []; launches = []
    def add(t, name, g, lds): kernels.append(t); launches.append((name, g, 256, lds))
    zt, nz = k_small.gen_zero(); add(zt, "zero_kernel", nz, 0)
    add(k_small.gen_mod(), "mod_kernel", 27, 2048)
    add(k_small.gen_ln("ln1_kernel", False, 0, 1, 0, WS["h"]), "ln1_kernel", 512, 0)
    t, lds = k_gemm.gen_gemm("qk_gemm_kernel", 2048, 8192, 576, 128, ('ws', WS['h']), k_gemm.bsel_qk, 1152, 8192, True,
                        k_gemm.epi_store_swapped(WS['q'], 8192, 2*2048*8192))
    add(t, "qk_gemm_kernel", 64*16, lds)
    t, lds = k_gemm.gen_gemm("v_gemm_kernel", 2048, 4096, 576, 128, ('ws', WS['h']), k_gemm.bsel_v, 1152, 8192, False,
                        k_gemm.epi_store_vt(WS['vt']))
    add(t, "v_gemm_kernel", 32*16, lds)
    add(k_chain.gen_chain(), "chain_kernel", 32, 163840)
    add(k_attn.gen_attn(), "attn_kernel", 512, 0)
    t, lds = k_gemm.gen_gemm("wo_gemm_kernel", 2048, 576, 4096, 64, ('ws', WS['o']), k_gemm.bsel_ptr(40, 128), 8192, 1152, True,
                        k_gemm.epi_resid(('ka', 0), 2, ('ws', WS['x1']), 9))
    add(t, "wo_gemm_kernel", 9*16, lds)
    add(k_small.gen_ln("ln2_kernel", True, WS['x1'], 4, 3, WS["h2"]), "ln2_kernel", 512, 0)
    t, lds = k_gemm.gen_gemm("ffn1_kernel", 2048, 9216, 576, 128, ('ws', WS['h2']), k_gemm.bsel_gu, 1152, 9216, True,
                        k_gemm.epi_gu(WS['hid']), interleave_gu=True)
    add(t, "ffn1_kernel", 72*16, lds)
    t, lds = k_gemm.gen_gemm("ffn2_kernel", 2048, 576, 4608, 64, ('ws', WS['hid']), k_gemm.bsel_ptr(80, 128), 9216, 1152, True,
                        k_gemm.epi_resid(('ws', WS['x1']), 5, ('ka', 104), 9))
    add(t, "ffn2_kernel", 9*16, lds)
    build(launches, kernels, path)
    check(path)
if __name__ == "__main__":
    make("t4.s")
```

```python
from asmlib import *
import asmlib

def wreg(f):
    if f < 64:
        return f"a[{4*f}:{4*f+3}]"
    b = 80 + 4 * (f - 64)
    return f"v[{b}:{b+3}]"
def wreg2(f, half):
    if f < 64:
        return f"a[{4*f+2*half}:{4*f+2*half+1}]"
    b = 80 + 4 * (f - 64) + 2 * half
    return f"v[{b}:{b+1}]"

LDS_WO = 0
LDS_MEM = 147456
LDS_SC = 147456 + 9216
LDS_O = 147456
LDS_STG = 147456

def gen_chain(nsteps=64, spin_limit=2000000, diag=False):
    stamps = []
    def stamp(i):
        if not diag: return
        lab = k.newlabel("st")
        k(f"""
        s_cmp_lg_u32 s20, 10
        s_cbranch_scc1 {lab}
        s_memtime s[52:53]
        s_waitcnt lgkmcnt(0)
        s_mov_b32 s{60+i}, s52
        """)
        k.label(lab)
    k = asmlib.K("chain_kernel")
    end = "chain_kernel_end"
    k(f"""
    s_cmp_ge_u32 s2, 32
    s_cbranch_scc1 {end}
    s_load_dwordx2 s[4:5], s[0:1], 120
    s_load_dwordx2 s[6:7], s[0:1], 8
    s_load_dwordx4 s[36:39], s[0:1], 16
    s_load_dwordx4 s[40:43], s[0:1], 32
    v_and_b32 v1, 15, v0
    v_bfe_u32 v2, v0, 4, 2
    v_lshrrev_b32 v3, 6, v0
    v_and_b32 v4, 63, v0
    s_nop 0
    v_readfirstlane_b32 s21, v3
    s_waitcnt lgkmcnt(0)
    """)
    srd(k, 8, 4, 5, WS_END)
    srd(k, 12, 6, 7, 9216)
    k(f"""
    v_lshrrev_b32 v5, 4, v0
    s_lshl_b32 s22, s2, 8
    v_mul_u32_u24 v6, 8192, v5
    v_lshl_add_u32 v6, v1, 4, v6
    v_add_u32 v6, s22, v6
    """)
    k(f"""
    v_bfe_u32 v7, v0, 2, 2
    v_lshl_add_u32 v7, v2, 2, v7
    v_mul_u32_u24 v7, 288, v7
    v_and_b32 v8, 3, v0
    v_lshlrev_b32 v8, 3, v8
    v_lshl_add_u32 v8, v3, 6, v8
    v_add_u32 v7, v7, v8
    """)
    wptr = {0: (36, 37), 1: (38, 39), 2: (40, 41)}
    for m in range(3):
        srd(k, 16, wptr[m][0], wptr[m][1], 576 * 8192)
        for half in range(2):
            for b in range(3):
                for i in range(6):
                    ii = b * 6 + i
                    k(f"s_mov_b32 s23, {(288*half + 16*ii)*8192}")
                    k(f"buffer_load_dwordx4 v[{16+4*i}:{19+4*i}], v6, s[16:19], s23 offen")
                k("s_waitcnt vmcnt(0)")
                for i in range(6):
                    ii = b * 6 + i
                    k(f"""
                    v_add_u32 v9, {16*ii}, v5
                    v_and_b32 v10, 0xffffffe0, v9
                    v_bfe_u32 v11, v9, 2, 1
                    v_lshl_add_u32 v10, v11, 4, v10
                    v_bfe_u32 v11, v9, 3, 2
                    v_lshl_add_u32 v10, v11, 2, v10
                    v_and_b32 v11, 3, v9
                    v_add_u32 v10, v10, v11
                    v_mul_u32_u24 v10, 288, v10
                    v_lshl_add_u32 v10, v1, 4, v10
                    ds_write_b128 v10, v[{16+4*i}:{19+4*i}]
                    """)
            k("s_waitcnt lgkmcnt(0)\ns_barrier")
            k("v_add_u32 v8, 46080, v7")
            for ks in range(9):
                for t in range(2):
                    f = (m * 18 + half * 9 + ks) * 2 + t
                    br = "v7" if ks < 5 else "v8"
                    ko = ks if ks < 5 else ks - 5
                    k(f"ds_read_b64_tr_b16 {wreg2(f,0)}, {br} offset:{ko*32*288 + t*32}")
                    k(f"ds_read_b64_tr_b16 {wreg2(f,1)}, {br} offset:{ko*32*288 + 16*288 + t*32}")
            k("s_waitcnt lgkmcnt(0)\ns_barrier")
    srd(k, 16, 42, 43, 4096 * 1152)
    k(f"""
    v_lshrrev_b32 v5, 3, v0
    v_and_b32 v6, 7, v0
    s_mul_i32 s22, s2, {128*1152}
    v_mul_u32_u24 v8, 1152, v5
    v_lshl_add_u32 v8, v6, 4, v8
    v_add_u32 v8, s22, v8
    v_mul_u32_u24 v9, 416, v5
    v_lshl_add_u32 v9, v6, 4, v9
    v_add_u32 v9, {LDS_STG}, v9
    v_bfe_u32 v7, v0, 2, 2
    v_lshl_add_u32 v7, v2, 2, v7
    v_mul_u32_u24 v7, 416, v7
    v_and_b32 v10, 3, v0
    v_lshlrev_b32 v10, 3, v10
    v_add_u32 v7, v7, v10
    v_mul_u32_u24 v10, 96, v3
    v_add_u32 v7, v7, v10
    v_add_u32 v7, {LDS_STG}, v7
    v_lshlrev_b32 v10, 4, v4
    v_mul_u32_u24 v11, {3*4096}, v3
    v_add_u32 v10, v10, v11
    """)
    for ksp in range(4):
        for nc in range(3):
            k(f"s_mov_b32 s23, {ksp*32*1152 + nc*384}")
            for i in range(3):
                k(f"buffer_load_dwordx4 v[{16+4*i}:{19+4*i}], v8, s[16:19], s23 offen offset:{i*128}")
            k("s_waitcnt vmcnt(0)")
            for i in range(3):
                k(f"ds_write_b128 v9, v[{16+4*i}:{19+4*i}] offset:{i*128}")
            k("s_waitcnt lgkmcnt(0)\ns_barrier")
            for j in range(3):
                k(f"ds_read_b64_tr_b16 v[{16+4*j}:{17+4*j}], v7 offset:{j*32}")
                k(f"ds_read_b64_tr_b16 v[{18+4*j}:{19+4*j}], v7 offset:{16*416 + j*32}")
            k("s_waitcnt lgkmcnt(0)")
            for j in range(3):
                k(f"v_add_u32 v11, {12*nc*4096}, v10")
                k(f"ds_write_b128 v11, v[{16+4*j}:{19+4*j}] offset:{j*4096 + ksp*1024}")
            k("s_waitcnt lgkmcnt(0)\ns_barrier")
    k(f"""
    v_and_b32 v15, 7, v0
    v_mul_u32_u24 v5, 1152, v15
    v_lshl_add_u32 v5, v2, 4, v5
    v_add_u32 v5, {LDS_MEM}, v5
    v_mul_u32_u24 v6, 576, v3
    v_add_u32 v6, v6, v4
    v_lshlrev_b32 v7, 3, v6
    v_lshlrev_b32 v6, 2, v6
    v_add_u32 v6, {LDS_MEM}, v6
    v_lshlrev_b32 v8, 13, v1
    v_lshl_add_u32 v8, v3, 6, v8
    v_lshl_add_u32 v8, v2, 3, v8
    v_lshl_add_u32 v9, v3, 5, v1
    v_lshlrev_b32 v9, 6, v9
    v_lshl_add_u32 v9, v2, 3, v9
    v_lshl_add_u32 v10, v15, 2, v2
    v_mul_u32_u24 v10, 48, v10
    v_add_u32 v10, {LDS_SC}, v10
    v_lshlrev_b32 v11, 4, v4
    v_lshlrev_b32 v12, 2, v2
    v_mul_u32_u24 v12, 2304, v12
    v_lshl_add_u32 v12, v1, 2, v12
    v_mul_u32_u24 v13, {9*64}, v3
    v_add_u32 v12, v12, v13
    v_lshlrev_b32 v13, 8, v1
    v_lshl_add_u32 v13, v3, 6, v13
    v_lshl_add_u32 v13, v2, 3, v13
    v_lshl_add_u32 v14, v3, 5, v1
    v_lshlrev_b32 v14, 4, v14
    v_lshl_add_u32 v14, v2, 3, v14
    s_mov_b32 s20, 0
    s_mov_b32 s44, 0x3fb8aa3b
    s_mov_b32 s45, 0x3db504f3
    v_cmp_gt_u32 s[46:47], 2, v2
    v_cmp_gt_u32 s[48:49], 8, v1
    v_add_u32 v0, {LDS_O}, v11
    v_mul_u32_u24 v3, {9*4096}, v3
    v_add_u32 v3, v3, v11
    """)
    KX = 16
    VX = 24
    AQ = 40
    MF = 64
    T = 72
    def kv_prefetch():
        k(f"""
        s_lshl_b32 s24, s20, 18
        s_lshl_b32 s25, s2, 8
        s_add_u32 s24, s24, s25
        s_add_u32 s24, s24, {WS['k']}
        s_add_u32 s26, s24, 131072
        s_lshl_b32 s25, s20, 5
        s_add_u32 s25, s25, s2
        s_lshl_b32 s25, s25, 13
        s_add_u32 s25, s25, {WS['vt']}
        buffer_load_dwordx2 v[{KX}:{KX+1}], v8, s[8:11], s24 offen
        buffer_load_dwordx2 v[{KX+2}:{KX+3}], v8, s[8:11], s24 offen offset:32
        buffer_load_dwordx2 v[{KX+4}:{KX+5}], v8, s[8:11], s26 offen
        buffer_load_dwordx2 v[{KX+6}:{KX+7}], v8, s[8:11], s26 offen offset:32
        """)
        for t in range(2):
            k(f"buffer_load_dwordx2 v[{VX+8*t+2}:{VX+8*t+3}], v9, s[8:11], s25 offen offset:{t*1024}")
            k(f"buffer_load_dwordx2 v[{VX+8*t+4}:{VX+8*t+5}], v9, s[8:11], s25 offen offset:{t*1024+32}")
            k(f"v_mov_b32 v{VX+8*t+6}, 0")
            k(f"v_mov_b32 v{VX+8*t+7}, 0")
    loop = "chain_loop"
    k.label(loop)
    stamp(0)
    first = k.newlabel("first"); memdone = k.newlabel("memdone"); poll = k.newlabel("poll"); pdone = k.newlabel("pdone")
    k(f"""
    s_cmp_eq_u32 s20, 0
    s_cbranch_scc1 {first}
    s_lshl_b32 s24, s20, 8
    s_add_u32 s24, s24, {WS['cnt']}
    v_mov_b32 v{T}, 0
    s_mov_b32 s27, 0
    s_cmp_lg_u32 s21, 0
    s_cbranch_scc1 {pdone}
    """)
    k.label(poll)
    k(f"""
    buffer_load_dword v{T+1}, v{T}, s[8:11], s24 offen sc1
    s_waitcnt vmcnt(0)
    v_readfirstlane_b32 s26, v{T+1}
    s_cmp_ge_u32 s26, 32
    s_cbranch_scc1 {pdone}
    s_sleep 1
    s_add_u32 s27, s27, 1
    s_cmp_lt_u32 s27, {spin_limit}
    s_cbranch_scc1 {poll}
    """)
    k.label(pdone)
    k("s_barrier")
    stamp(7)
    k(f"""
    s_mul_i32 s24, s20, {18432*NREP}
    s_add_u32 s24, s24, {WS['acc']}
    """)
    for rp in range(NREP):
        base = 40 if rp % 2 == 0 else 58
        k(f"s_add_u32 s25, s24, {rp*18432}")
        k(f"s_add_u32 s26, s24, {rp*18432+4096}")
        for i in range(9):
            if i < 8:
                k(f"buffer_load_dwordx2 v[{base+2*i}:{base+1+2*i}], v7, s[8:11], s25 offen offset:{i*512} sc1")
            else:
                k(f"buffer_load_dwordx2 v[{base+2*i}:{base+1+2*i}], v7, s[8:11], s26 offen sc1")
        if rp % 2 == 1 or rp == NREP - 1:
            k("s_waitcnt vmcnt(0)")
            for i in range(18):
                if rp % 2 == 1:
                    k(f"v_add_f32 v{40+i}, v{40+i}, v{58+i}")
                if rp <= 1:
                    k(f"v_mov_b32 v{16+i}, v{40+i}")
                else:
                    k(f"v_add_f32 v{16+i}, v{16+i}, v{40+i}")
    for i in range(9):
        k(f"v_cvt_pk_bf16_f32 v{16+2*i}, v{16+2*i}, v{17+2*i}")
        k(f"ds_write_b32 v6, v{16+2*i} offset:{i*256}")
    k(f"s_branch {memdone}")
    k.label(first)
    k(f"v_lshrrev_b32 v{T+7}, 1, v7")
    for i in range(9):
        k(f"buffer_load_dword v{T+ (i%6)}, v{T+7}, s[12:15], 0 offen offset:{i*256}")
        if i % 6 == 5 or i == 8:
            k("s_waitcnt vmcnt(0)")
            lo = i - (i % 6)
            for j in range(lo, i + 1):
                k(f"ds_write_b32 v6, v{T + (j%6)} offset:{j*256}")
    k.label(memdone)
    kv_prefetch()
    stamp(1)
    k("s_waitcnt lgkmcnt(0)\ns_barrier")
    stamp(2)
    k(f"ds_read_b128 v[{MF}:{MF+3}], v5")
    for ks in range(18):
        cur = MF + 4 * (ks & 1); nxt = MF + 4 * ((ks + 1) & 1)
        if ks < 17:
            k(f"ds_read_b128 v[{nxt}:{nxt+3}], v5 offset:{(ks+1)*64}")
            k("s_waitcnt lgkmcnt(1)")
        else:
            k("s_waitcnt lgkmcnt(0)")
        for m in range(3):
            for t in range(2):
                f = (m * 18 + ks) * 2 + t
                c = AQ + 8 * m + 4 * t
                cin = "0" if ks == 0 else f"v[{c}:{c+3}]"
                if m < 2:
                    k(f"v_mfma_f32_16x16x32_bf16 v[{c}:{c+3}], {wreg(f)}, v[{cur}:{cur+3}], {cin}")
                else:
                    k(f"v_mfma_f32_16x16x32_bf16 v[{c}:{c+3}], v[{cur}:{cur+3}], {wreg(f)}, {cin}")
    k("s_nop 7\ns_nop 1")
    stamp(3)
    QF = MF
    KF = MF + 4
    for i in range(4):
        k(f"v_cvt_pk_bf16_f32 v{QF+i}, v{AQ+2*i}, v{AQ+2*i+1}")
        k(f"v_cvt_pk_bf16_f32 v{KF+i}, v{AQ+8+2*i}, v{AQ+8+2*i+1}")
    for t in range(2):
        k(f"v_cvt_pk_bf16_f32 v{VX+8*t}, v{AQ+16+4*t}, v{AQ+17+4*t}")
        k(f"v_cvt_pk_bf16_f32 v{VX+8*t+1}, v{AQ+18+4*t}, v{AQ+19+4*t}")
    k(f"""
    s_lshl_b32 s24, s20, 5
    s_add_u32 s24, s24, s2
    s_lshl_b32 s24, s24, 11
    s_add_u32 s25, s24, {WS['vmt']}
    s_add_u32 s24, s24, {WS['km']}
    s_mov_b64 s[50:51], exec
    s_mov_b64 exec, s[48:49]
    buffer_store_dwordx2 v[{KF}:{KF+1}], v13, s[8:11], s24 offen
    buffer_store_dwordx2 v[{KF+2}:{KF+3}], v13, s[8:11], s24 offen offset:32
    s_mov_b64 exec, s[46:47]
    buffer_store_dwordx2 v[{VX}:{VX+1}], v14, s[8:11], s25 offen
    buffer_store_dwordx2 v[{VX+8}:{VX+9}], v14, s[8:11], s25 offen offset:256
    s_mov_b64 exec, s[50:51]
    """)
    last = k.newlabel("last")
    k(f"""
    s_cmp_ge_u32 s20, {nsteps-1}
    s_cbranch_scc1 {last}
    s_waitcnt vmcnt(0)
    """)
    k(f"""
    v_mfma_f32_16x16x32_bf16 v[{AQ}:{AQ+3}], v[{KF}:{KF+3}], v[{QF}:{QF+3}], 0
    v_mfma_f32_16x16x32_bf16 v[{AQ+4}:{AQ+7}], v[{KX}:{KX+3}], v[{QF}:{QF+3}], 0
    v_mfma_f32_16x16x32_bf16 v[{AQ+8}:{AQ+11}], v[{KX+4}:{KX+7}], v[{QF}:{QF+3}], 0
    s_nop 7
    s_nop 1
    s_mul_i32 s24, s21, 1536
    v_add_u32 v{T}, s24, v10
    s_mov_b64 exec, s[48:49]
    ds_write_b128 v{T}, v[{AQ}:{AQ+3}]
    ds_write_b128 v{T}, v[{AQ+4}:{AQ+7}] offset:16
    ds_write_b128 v{T}, v[{AQ+8}:{AQ+11}] offset:32
    s_mov_b64 exec, s[50:51]
    s_waitcnt lgkmcnt(0)
    s_barrier
    """)
    stamp(4)
    k(f"""
    ds_read_b128 v[{AQ}:{AQ+3}], v10
    ds_read_b128 v[{AQ+4}:{AQ+7}], v10 offset:16
    ds_read_b128 v[{AQ+8}:{AQ+11}], v10 offset:32
    """)
    for w in range(1, 4):
        k(f"""
        ds_read_b128 v[{AQ+12}:{AQ+15}], v10 offset:{w*1536}
        ds_read_b128 v[{AQ+16}:{AQ+19}], v10 offset:{w*1536+16}
        ds_read_b128 v[{AQ+20}:{AQ+23}], v10 offset:{w*1536+32}
        s_waitcnt lgkmcnt(0)
        """)
        for i in range(12):
            k(f"v_add_f32 v{AQ+i}, v{AQ+i}, v{AQ+12+i}")
    for i in range(0, 12, 2):
        k(f"""
        v_cvt_pk_bf16_f32 v{T}, v{AQ+i}, v{AQ+i+1}
        v_lshlrev_b32 v{AQ+i}, 16, v{T}
        v_and_b32 v{AQ+i+1}, 0xffff0000, v{T}
        v_mul_f32 v{AQ+i}, s45, v{AQ+i}
        v_mul_f32 v{AQ+i+1}, s45, v{AQ+i+1}
        v_cvt_pk_bf16_f32 v{T}, v{AQ+i}, v{AQ+i+1}
        v_lshlrev_b32 v{AQ+i}, 16, v{T}
        v_and_b32 v{AQ+i+1}, 0xffff0000, v{T}
        """)
    k(f"v_mov_b32 v{T+1}, 0xff800000")
    for i in range(4):
        k(f"v_cndmask_b32 v{AQ+i}, v{T+1}, v{AQ+i}, s[46:47]")
    k(f"""
    v_max3_f32 v{T}, v{AQ}, v{AQ+1}, v{AQ+2}
    v_max3_f32 v{T}, v{T}, v{AQ+3}, v{AQ+4}
    v_max3_f32 v{T}, v{T}, v{AQ+5}, v{AQ+6}
    v_max3_f32 v{T}, v{T}, v{AQ+7}, v{AQ+8}
    v_max3_f32 v{T}, v{T}, v{AQ+9}, v{AQ+10}
    v_max_f32 v{T}, v{T}, v{AQ+11}
    v_mov_b32 v{T+1}, v{T}
    s_nop 1
    v_permlane32_swap_b32 v{T}, v{T+1}
    s_nop 1
    v_max_f32 v{T}, v{T}, v{T+1}
    v_mov_b32 v{T+1}, v{T}
    s_nop 1
    v_permlane16_swap_b32 v{T}, v{T+1}
    s_nop 1
    v_max_f32 v{T}, v{T}, v{T+1}
    """)
    for i in range(12):
        k(f"""
        v_sub_f32 v{AQ+i}, v{AQ+i}, v{T}
        v_mul_f32 v{AQ+i}, s44, v{AQ+i}
        v_exp_f32 v{AQ+i}, v{AQ+i}
        """)
    k(f"s_nop 0\nv_add_f32 v{T}, v{AQ}, v{AQ+1}")
    for i in range(2, 12):
        k(f"v_add_f32 v{T}, v{T}, v{AQ+i}")
    k(f"""
    v_mov_b32 v{T+1}, v{T}
    s_nop 1
    v_permlane32_swap_b32 v{T}, v{T+1}
    s_nop 1
    v_add_f32 v{T}, v{T}, v{T+1}
    v_mov_b32 v{T+1}, v{T}
    s_nop 1
    v_permlane16_swap_b32 v{T}, v{T+1}
    s_nop 1
    v_add_f32 v{T}, v{T}, v{T+1}
    v_rcp_f32 v{T}, v{T}
    s_nop 0
    """)
    for i in range(12):
        k(f"v_mul_f32 v{AQ+i}, v{AQ+i}, v{T}")
    for i in range(6):
        k(f"v_cvt_pk_bf16_f32 v{MF+i}, v{AQ+2*i}, v{AQ+2*i+1}")
    k(f"v_mov_b32 v{MF+6}, 0\nv_mov_b32 v{MF+7}, 0\ns_nop 1")
    for t in range(2):
        k(f"v_mfma_f32_16x16x32_bf16 v[{AQ+4*t}:{AQ+4*t+3}], v[{VX+8*t}:{VX+8*t+3}], v[{MF}:{MF+3}], 0")
    for t in range(2):
        k(f"v_mfma_f32_16x16x32_bf16 v[{AQ+4*t}:{AQ+4*t+3}], v[{VX+8*t+4}:{VX+8*t+7}], v[{MF+4}:{MF+7}], v[{AQ+4*t}:{AQ+4*t+3}]")
    k("s_nop 7\ns_nop 1")
    for i in range(4):
        k(f"v_cvt_pk_bf16_f32 v{T+i}, v{AQ+2*i}, v{AQ+2*i+1}")
    k(f"""
    s_lshl_b32 s24, s21, 10
    s_add_u32 s24, s24, {LDS_O}
    v_add_u32 v{T+4}, s24, v11
    ds_write_b128 v{T+4}, v[{T}:{T+3}]
    """)
    k("s_waitcnt lgkmcnt(0)\ns_barrier")
    stamp(5)
    for i in range(4):
        k(f"ds_read_b128 v[{AQ+4*i}:{AQ+4*i+3}], v0 offset:{i*1024}")
    k(f"""
    s_add_u32 s24, s20, 1
    s_mul_i32 s24, s24, {18432*NREP}
    s_add_u32 s24, s24, {WS['acc']}
    s_and_b32 s25, s2, {NREP-1}
    s_mul_i32 s25, s25, 18432
    s_add_u32 s24, s24, s25
    s_add_u32 s25, s24, 2304
    s_add_u32 s26, s24, 4608
    s_add_u32 s27, s24, 6912
    """)
    BF = 56
    OA = 72
    seq = [(nt, kp) for nt in range(9) for kp in range(4)]
    def rd(i):
        nt, kp = seq[i]
        bf = BF + 4 * (i % 4)
        k(f"ds_read_b128 v[{bf}:{bf+3}], v3 offset:{nt*4096 + kp*1024}")
    for i in range(3):
        rd(i)
    for i, (nt, kp) in enumerate(seq):
        oa = OA + 4 * (nt & 1)
        bf = BF + 4 * (i % 4)
        if i + 3 < len(seq):
            rd(i + 3)
            k("s_waitcnt lgkmcnt(3)")
        else:
            k(f"s_waitcnt lgkmcnt({len(seq)-1-i})")
        cin = "0" if kp == 0 else f"v[{oa}:{oa+3}]"
        k(f"v_mfma_f32_16x16x32_bf16 v[{oa}:{oa+3}], v[{AQ+4*kp}:{AQ+4*kp+3}], v[{bf}:{bf+3}], {cin}")
        if kp == 1 and nt > 0:
            po = OA + 4 * ((nt - 1) & 1)
            k("s_nop 2\ns_mov_b64 exec, s[46:47]")
            for r in range(4):
                k(f"buffer_atomic_add_f32 v{po+r}, v12, s[8:11], s{24+r} offen offset:{(nt-1)*64}")
            k("s_mov_b64 exec, s[50:51]")
    k("s_nop 7\ns_nop 1")
    k("s_mov_b64 exec, s[46:47]")
    for r in range(4):
        k(f"buffer_atomic_add_f32 v{OA+r}, v12, s[8:11], s{24+r} offen offset:{8*64}")
    k("s_mov_b64 exec, s[50:51]")
    stamp(6)
    k("s_waitcnt vmcnt(0)\ns_barrier")
    nocnt = k.newlabel("nocnt")
    k(f"""
    s_cmp_lg_u32 s21, 0
    s_cbranch_scc1 {nocnt}
    s_add_u32 s24, s20, 1
    s_lshl_b32 s24, s24, 8
    s_add_u32 s24, s24, {WS['cnt']}
    v_mov_b32 v{T}, 0
    v_mov_b32 v{T+1}, 1
    s_mov_b64 exec, 1
    buffer_atomic_add v{T+1}, v{T}, s[8:11], s24 offen
    s_mov_b64 exec, s[50:51]
    """)
    k.label(nocnt)
    k(f"""
    s_add_u32 s20, s20, 1
    s_branch {loop}
    """)
    k.label(last)
    k("s_waitcnt vmcnt(0)")
    if diag:
        k("s_load_dwordx2 s[4:5], s[0:1], 112\ns_waitcnt lgkmcnt(0)")
        srd(k, 12, 4, 5, 256)
        k("s_cmp_lg_u32 s2, 0\ns_cbranch_scc1 chain_kernel_end\ns_cmp_lg_u32 s21, 0\ns_cbranch_scc1 chain_kernel_end")
        k("v_mov_b32 v0, 0")
        for i in range(8):
            k(f"v_mov_b32 v1, s{60+i}\nbuffer_store_dword v1, v0, s[12:15], 0 offen offset:{4*i}")
    k.label(end)
    return k.text(512, 72, 256)
```
